```python
import torch

def _softmax(x, axis=-1):
    return torch.softmax(x, dim=axis)
def _gelu(x):
    return torch.nn.functional.gelu(x, approximate="tanh")
def _silu(x):
    return torch.nn.functional.silu(x)
def _sigmoid(x):
    return torch.sigmoid(x)
def _layernorm(x, axis=-1, eps=1e-5):
    m = x.mean(dim=axis, keepdim=True)
    v = x.var(dim=axis, keepdim=True, unbiased=False)
    return (x - m) / torch.sqrt(v + eps)
def _scatter_add(tgt, idx, src, axis=0):
    return tgt.clone().index_add_(axis, idx, src)
def _segment_sum(src, seg, n):
    out = torch.zeros((n,) + src.shape[1:], dtype=src.dtype)
    return out.index_add_(0, seg, src)
def _pad(x, pw):
    flat = tuple(v for pair in reversed(pw) for v in pair)
    return torch.nn.functional.pad(x, flat)

kernel_name = 'recurrent_scan__linear_kernel_hedgehog__glu_gated_swiglu__prompt'

def setup_inputs():

    _w = (lambda a: (lambda t: t.to(torch.bfloat16) if t.is_floating_point() else t)(torch.as_tensor(a)))
    def _A_setup():
        B, S, D, H = 1, 2048, 512, 32
        Dh = D // H
        return {
            "x": _w((lambda *s: torch.randn(*s, dtype=torch.bfloat16) * 0.05)(B, S, D)),
            "wqkv": _w((lambda *s: torch.randn(*s, dtype=torch.bfloat16) * 0.8)(D, 3 * D)),
            "w_phi": _w((lambda *s: torch.randn(*s, dtype=torch.bfloat16) * 0.8)(H, Dh, Dh) * (Dh ** -0.5)),
            "wo": _w((lambda *s: torch.randn(*s, dtype=torch.bfloat16) * 0.8)(D, D)),
        }
    _A_in = _A_setup()

    def _B_setup():
        B, S, D, F = 1, 2048, 512, 1376
        return {
            "x": _w((lambda *s: torch.randn(*s, dtype=torch.bfloat16) * 0.05)(B, S, D)),
            "w1": _w((lambda *s: torch.randn(*s, dtype=torch.bfloat16) * 0.2)(D, F) * (2.0 / D) ** 0.5),
            "w3": _w((lambda *s: torch.randn(*s, dtype=torch.bfloat16) * 0.2)(D, F) * (2.0 / D) ** 0.5),
            "w2": _w((lambda *s: torch.randn(*s, dtype=torch.bfloat16) * 0.2)(F, D) * (2.0 / F) ** 0.5),
        }
    _B_in = _B_setup()

    return {
        "A_x": _A_in["x"],
        "A_wqkv": _A_in["wqkv"],
        "A_w_phi": _A_in["w_phi"],
        "A_wo": _A_in["wo"],
        "B_x": _B_in["x"],
        "B_w1": _B_in["w1"],
        "B_w3": _B_in["w3"],
        "B_w2": _B_in["w2"],
    }

def reference(A_x, A_wqkv, A_w_phi, A_wo, B_x, B_w1, B_w3, B_w2):
    def _A_ref(x, wqkv, w_phi, wo):
        B, S, D = x.shape
        H = 32; Dh = D // H
        qkv = (lambda x, *d: x.permute(*d))((x @ wqkv).reshape(B, S, 3, H, Dh), 2, 0, 3, 1, 4)
        q, k, v = qkv[0], qkv[1], qkv[2]
        pq = torch.einsum("bhsd,hdf->bhsf", q, w_phi)
        pk = torch.einsum("bhsd,hdf->bhsf", k, w_phi)
        phi_q = torch.concatenate([_softmax(pq, axis=-1), _softmax(-pq, axis=-1)], axis=-1)
        phi_k = torch.concatenate([_softmax(pk, axis=-1), _softmax(-pk, axis=-1)], axis=-1)
        kv = torch.einsum("bhsf,bhsd->bhfd", phi_k, v)
        z  = torch.einsum("bhsf->bhf", phi_k)
        num = torch.einsum("bhqf,bhfd->bhqd", phi_q, kv)
        den = torch.einsum("bhqf,bhf->bhq", phi_q, z)[..., None] + 1e-6
        o = num / den
        return (lambda x, *d: x.permute(*d))(o, 0, 2, 1, 3).reshape(B, S, D) @ wo

    def _B_ref(x, w1, w3, w2):
        gate = torch.einsum("bsd,df->bsf", x, w1)
        up = torch.einsum("bsd,df->bsf", x, w3)
        h = _silu(gate) * up
        out = torch.einsum("bsf,fd->bsd", h, w2)
        return out

    x = A_x
    xn = _layernorm(x, axis=-1)
    s = _A_ref(xn, A_wqkv, A_w_phi, A_wo)
    g = _silu(_B_ref(xn, B_w1, B_w3, B_w2))
    return x + s * g
```

```python
import re

TRANS = ("v_exp_f32", "v_rcp_f32", "v_rsq_f32", "v_sqrt_f32", "v_log_f32", "v_sin_f32", "v_cos_f32")


def _split_ops(s):
    out, depth, cur = [], 0, ""
    for ch in s:
        if ch == "[":
            depth += 1
        if ch == "]":
            depth -= 1
        if ch == "," and depth == 0:
            out.append(cur.strip())
            cur = ""
        else:
            cur += ch
    if cur.strip():
        out.append(cur.strip())
    return out


_reg_re = re.compile(r"^-?(?:abs\()?\|?([vsa])(?:\[(\d+):(\d+)\]|(\d+))\)?\|?$")


def regs_of(op):
    op = op.strip()
    tok = op.split()[0] if op else op
    m = _reg_re.match(tok)
    if m:
        k = m.group(1)
        if m.group(2) is not None:
            return {(k, i) for i in range(int(m.group(2)), int(m.group(3)) + 1)}
        return {(k, int(m.group(4)))}
    if tok in ("vcc", "exec", "m0", "vcc_lo", "vcc_hi", "exec_lo", "exec_hi", "scc"):
        base = tok.split("_")[0]
        return {("x", base)}
    return set()


class Ins:
    __slots__ = ("kind", "wr", "rd", "passes", "srcc", "srcab", "states", "text", "dpp", "perm", "trans",
                 "wide_store", "store_data", "rdlane", "lds_dma")

    def __init__(self):
        self.kind = ""
        self.wr = set()
        self.rd = set()
        self.passes = 0
        self.srcc = set()
        self.srcab = set()
        self.states = 1
        self.dpp = False
        self.perm = False
        self.trans = False
        self.wide_store = False
        self.store_data = set()
        self.rdlane = False
        self.lds_dma = False


def parse(text):
    t = text.split(";")[0].strip()
    parts = t.split(None, 1)
    mn = parts[0]
    ops = _split_ops(parts[1]) if len(parts) > 1 else []
    I = Ins()
    I.text = t
    R = [regs_of(o) for o in ops]
    if mn.startswith("v_mfma"):
        I.kind = "mfma"
        I.passes = 8 if "32x32" in mn else 4
        I.wr = R[0]
        I.srcab = R[1] | R[2]
        I.srcc = R[3]
        I.rd = I.srcab | I.srcc
    elif mn.startswith("v_"):
        I.kind = "valu"
        I.trans = any(mn.startswith(x) for x in TRANS)
        I.dpp = ("row_" in t) or ("quad_perm" in t) or ("_dpp" in mn)
        if mn.startswith("v_permlane"):
            I.perm = True
            I.wr = R[0] | R[1]
            I.rd = R[0] | R[1]
        elif mn.startswith("v_readfirstlane") or mn.startswith("v_readlane"):
            I.rdlane = True
            I.wr = R[0]
            I.rd = set().union(*R[1:])
        elif "_co_" in mn:
            I.wr = R[0] | R[1]
            I.rd = set().union(*R[2:])
        elif mn.startswith("v_cmp"):
            I.wr = R[0]
            I.rd = set().union(*R[1:])
        else:
            I.wr = R[0]
            I.rd = set().union(*R[1:]) if len(R) > 1 else set()
            if mn.startswith("v_fmac") or mn.startswith("v_cvt_pk") and False:
                I.rd |= R[0]
            if mn.startswith("v_cndmask") and len(ops) == 3:
                I.rd |= {("x", "vcc")}
    elif mn.startswith("buffer_") or mn.startswith("global_"):
        I.kind = "vmem"
        is_lds = re.search(r"\blds\b", t) is not None
        if "load" in mn and not is_lds:
            I.wr = R[0]
            I.rd = set().union(*R[1:])
            if "d16" in mn:
                I.rd |= R[0]
        else:
            I.rd = set().union(*R)
            if is_lds:
                I.lds_dma = True
                I.rd |= {("x", "m0")}
            if "store" in mn:
                I.store_data = R[0] if mn.startswith("buffer_") else R[1]
                I.wide_store = ("x3" in mn) or ("x4" in mn)
    elif mn.startswith("ds_"):
        I.kind = "ds"
        if mn.startswith("ds_read") or mn.startswith("ds_bpermute") or mn.startswith("ds_swizzle"):
            I.wr = R[0]
            I.rd = set().union(*R[1:])
        else:
            I.rd = set().union(*R)
    elif mn.startswith("s_"):
        I.kind = "salu"
        if mn == "s_nop":
            I.states = int(ops[0], 0) + 1
        elif mn.startswith(("s_waitcnt", "s_barrier", "s_branch", "s_cbranch", "s_endpgm", "s_setprio", "s_sleep")):
            pass
        elif mn.startswith("s_cmp"):
            I.rd = set().union(*R)
        else:
            I.wr = R[0]
            I.rd = set().union(*R[1:]) if len(R) > 1 else set()
    else:
        raise ValueError("unknown instr " + text)
    return I


def vset(S):
    return {r for r in S if r[0] in ("v", "a")}


def sset(S):
    return {r for r in S if r[0] == "s" or r == ("x", "vcc")}


def need(P, X):
    n = 0
    if P.kind == "valu":
        w = vset(P.wr)
        if X.kind == "mfma" and (w & X.rd):
            n = max(n, 2)
        if X.kind == "valu":
            if P.trans and not X.trans and (w & X.rd):
                n = max(n, 1)
            if X.dpp and (w & X.rd):
                n = max(n, 2)
            if X.perm and (w & X.rd):
                n = max(n, 2)
            if X.rdlane and (w & X.rd):
                n = max(n, 1)
        ws = sset(P.wr)
        if ws:
            if X.kind == "valu" and (ws & X.rd):
                n = max(n, 4 if X.rdlane else 2)
            if X.kind == "vmem" and (ws & X.rd):
                n = max(n, 5)
            if X.kind == "salu" and (ws & X.rd):
                n = max(n, 1)
    elif P.kind == "mfma":
        d = P.wr
        ov = {4: 6, 8: 10}[P.passes]
        rdw = {4: 8, 8: 12}[P.passes]
        war = {4: 3, 8: 7}[P.passes]
        if X.kind == "mfma":
            if d & X.srcab:
                n = max(n, rdw)
            if d & X.srcc:
                if not (X.srcc == d and X.passes == P.passes):
                    n = max(n, ov)
            if (d & X.wr) and not (X.wr == d and X.srcc == d):
                n = max(n, rdw)
        elif X.kind in ("valu", "vmem", "ds"):
            if d & (X.rd | X.wr):
                n = max(n, rdw)
            if X.kind == "valu" and (P.srcc & X.wr):
                n = max(n, war)
    elif P.kind == "salu":
        if ("x", "m0") in P.wr and X.lds_dma:
            n = max(n, 1)
    elif P.kind == "vmem":
        if P.wide_store and (P.store_data & X.wr):
            n = max(n, 2)
    return n


class Asm:
    def __init__(self):
        self.lines = []
        self.hist = []

    def raw(self, text):
        self.lines.append(text)

    def label(self, name):
        self.lines.append(name + ":")

    def fence(self, n=12):
        self.I("s_nop %d" % min(n - 1, 15))

    def I(self, text):
        X = parse(text)
        dist = 0
        req = 0
        for P in reversed(self.hist[-24:]):
            r = need(P, X) - dist
            if r > req:
                req = r
            dist += P.states
            if dist > 24:
                break
        if req > 0:
            nop = "s_nop %d" % (req - 1)
            self.lines.append("    " + nop)
            self.hist.append(parse(nop))
        self.lines.append("    " + text)
        self.hist.append(X)

    def __call__(self, text):
        for ln in text.strip().split("\n"):
            ln = ln.strip()
            if not ln or ln.startswith(";"):
                continue
            if ln.endswith(":"):
                self.label(ln[:-1])
            else:
                self.I(ln)

    def text(self):
        return "\n".join(self.lines) + "\n"
```

```python
import sys
from asmlib import Asm

NAME = "recurrent_scan__linear_kernel_hedgehog__glu_gated_swiglu__prompt"
OUT = "cdna_kernels/%s.s" % NAME

XN_OFF = 0
PHIQ_OFF = 2 << 20
H_OFF = 6 << 20
KV_OFF = 12 << 20
XN_BYTES = 2048 * 1024
PHIQ_BYTES = 2048 * 2048
H_BYTES = 2048 * 2752
KV_BYTES = 65536 + 4096
LOG2E = 0x3FB8AA3B
NLOG2E = 0xBFB8AA3B

HEADER = """; Kernarg layout for this problem (88 bytes, ptrs only, base s[0:1]):
"""


def srd(a, d, lo, hi, off, nbytes):
    if off:
        a("s_add_u32 s%d, s%d, 0x%x" % (d, lo, off))
        a("s_addc_u32 s%d, s%d, 0" % (d + 1, hi))
    else:
        a("s_mov_b32 s%d, s%d" % (d, lo))
        a("s_mov_b32 s%d, s%d" % (d + 1, hi))
    a("s_mov_b32 s%d, 0x%x" % (d + 2, nbytes))
    a("s_mov_b32 s%d, 0x00020000" % (d + 3))


def allreduce64(a, t, u, op="v_add_f32"):
    for r in (8, 4, 2, 1):
        a("%s_dpp v%d, v%d, v%d row_ror:%d row_mask:0xf bank_mask:0xf" % (op, t, t, t, r))
    a("v_mov_b32 v%d, v%d" % (u, t))
    a("v_permlane16_swap_b32 v%d, v%d" % (t, u))
    a("%s v%d, v%d, v%d" % (op, t, t, u))
    a("v_mov_b32 v%d, v%d" % (u, t))
    a("v_permlane32_swap_b32 v%d, v%d" % (t, u))
    a("%s v%d, v%d, v%d" % (op, t, t, u))


def kd(name, vgpr, sgpr=102):
    acc = (vgpr + 3) // 4 * 4
    return """.section .rodata,"a"
.p2align 6
.amdhsa_kernel %s
  .amdhsa_next_free_vgpr %d
  .amdhsa_next_free_sgpr %d
  .amdhsa_accum_offset %d
  .amdhsa_group_segment_fixed_size 0
  .amdhsa_kernarg_size 88
  .amdhsa_user_sgpr_count 2
  .amdhsa_user_sgpr_kernarg_segment_ptr 1
  .amdhsa_system_sgpr_workgroup_id_x 1
.end_amdhsa_kernel
""" % (name, vgpr, sgpr, acc)


def begin_kernel(a, name):
    a.raw(".text")
    a.raw(".globl %s" % name)
    a.raw(".p2align 8")
    a.raw(".type %s,@function" % name)
    a.label(name)
    a.hist = []


def gen_k0(a):
    begin_kernel(a, "k0_kernel")
    a("""
    s_cmp_ge_u32 s2, 256
    s_cbranch_scc1 K0_done
    s_load_dwordx2 s[4:5], s[0:1], 0
    s_load_dwordx2 s[6:7], s[0:1], 80
    v_lshrrev_b32 v1, 6, v0
    v_and_b32 v2, 63, v0
    s_lshl_b32 s3, s2, 3
    v_add_u32 v1, s3, v1
    v_lshlrev_b32 v3, 10, v1
    v_lshl_add_u32 v3, v2, 4, v3
    s_lshl_b32 s3, s2, 9
    v_add_u32 v20, s3, v0
    v_lshlrev_b32 v20, 4, v20
    v_mov_b32 v24, 0
    v_mov_b32 v25, 0
    v_mov_b32 v26, 0
    v_mov_b32 v27, 0
    s_waitcnt lgkmcnt(0)
    """)
    srd(a, 8, 4, 5, 0, XN_BYTES)
    srd(a, 12, 6, 7, XN_OFF, XN_BYTES)
    srd(a, 16, 6, 7, KV_OFF, KV_BYTES)
    a("buffer_load_dwordx4 v[4:7], v3, s[8:11], 0 offen")
    a("buffer_store_dwordx4 v[24:27], v20, s[16:19], 0 offen")
    a("s_waitcnt vmcnt(1)")
    for i in range(4):
        a("v_lshlrev_b32 v%d, 16, v%d" % (8 + 2 * i, 4 + i))
        a("v_and_b32 v%d, 0xffff0000, v%d" % (9 + 2 * i, 4 + i))
    a("v_add_f32 v16, v8, v9")
    for i in range(2, 8):
        a("v_add_f32 v16, v16, v%d" % (8 + i))
    allreduce64(a, 16, 17)
    a("v_mul_f32 v16, 0x3b000000, v16")
    a("v_sub_f32 v18, v8, v16")
    a("v_mul_f32 v17, v18, v18")
    for i in range(1, 8):
        a("v_sub_f32 v18, v%d, v16" % (8 + i))
        a("v_fmac_f32 v17, v18, v18")
    allreduce64(a, 17, 18)
    a("v_mul_f32 v17, 0x3b000000, v17")
    a("v_cvt_pk_bf16_f32 v16, v16, v17")
    a("v_and_b32 v17, 0xffff0000, v16")
    a("v_lshlrev_b32 v16, 16, v16")
    a("v_add_f32 v17, 0x3727c5ac, v17")
    a("v_cvt_pk_bf16_f32 v17, v17, v17")
    a("v_lshlrev_b32 v17, 16, v17")
    a("v_sqrt_f32 v17, v17")
    a("v_cvt_pk_bf16_f32 v17, v17, v17")
    a("v_lshlrev_b32 v17, 16, v17")
    a("v_rcp_f32 v17, v17")
    for i in range(8):
        a("v_sub_f32 v%d, v%d, v16" % (8 + i, 8 + i))
    for i in range(4):
        a("v_cvt_pk_bf16_f32 v%d, v%d, v%d" % (4 + i, 8 + 2 * i, 9 + 2 * i))
    for i in range(4):
        a("v_lshlrev_b32 v%d, 16, v%d" % (8 + 2 * i, 4 + i))
        a("v_and_b32 v%d, 0xffff0000, v%d" % (9 + 2 * i, 4 + i))
    for i in range(8):
        a("v_mul_f32 v%d, v%d, v17" % (8 + i, 8 + i))
    for i in range(4):
        a("v_cvt_pk_bf16_f32 v%d, v%d, v%d" % (4 + i, 8 + 2 * i, 9 + 2 * i))
    a("buffer_store_dwordx4 v[4:7], v3, s[12:15], 0 offen")
    a.label("K0_done")
    a("s_endpgm")
    return kd("k0_kernel", 32, 32)


def main():
    a = Asm()
    launches = []
    kds = []
    kds.append(gen_k0(a))
    launches.append("; @launch kernel=k0_kernel grid=(256,1,1) block=(512,1,1) lds=0")
    txt = HEADER + "\n".join(launches) + "\n" + '.amdgcn_target "amdgcn-amd-amdhsa--gfx950"\n' + a.text() + "".join(kds)
    open(OUT, "w").write(txt)


if __name__ == "__main__":
    main()
```

```python
from asmlib import Asm
NAME = "recurrent_scan__linear_kernel_hedgehog__glu_gated_swiglu__prompt"
OUT = "cdna_kernels/%s.s" % NAME

XN_OFF = 0
PHIQ_OFF = 2 << 20
H_OFF = 6 << 20
KV_OFF = 12 << 20
XN_BYTES = 2048 * 1024
PHIQ_BYTES = 2048 * 2048
H_BYTES = 2048 * 2752
KV_BYTES = 65536 + 4096
LOG2E = 0x3FB8AA3B
NLOG2E = 0xBFB8AA3B

HEADER = """; Kernarg layout for this problem (88 bytes, ptrs only, base s[0:1]):
"""


def srd(a, d, lo, hi, off, nbytes):
    if off:
        a("s_add_u32 s%d, s%d, 0x%x" % (d, lo, off))
        a("s_addc_u32 s%d, s%d, 0" % (d + 1, hi))
    else:
        a("s_mov_b32 s%d, s%d" % (d, lo))
        a("s_mov_b32 s%d, s%d" % (d + 1, hi))
    a("s_mov_b32 s%d, 0x%x" % (d + 2, nbytes))
    a("s_mov_b32 s%d, 0x00020000" % (d + 3))


def allreduce64(a, t, u, op="v_add_f32"):
    for r in (8, 4, 2, 1):
        a("%s_dpp v%d, v%d, v%d row_ror:%d row_mask:0xf bank_mask:0xf" % (op, t, t, t, r))
    a("v_mov_b32 v%d, v%d" % (u, t))
    a("v_permlane16_swap_b32 v%d, v%d" % (t, u))
    a("%s v%d, v%d, v%d" % (op, t, t, u))
    a("v_mov_b32 v%d, v%d" % (u, t))
    a("v_permlane32_swap_b32 v%d, v%d" % (t, u))
    a("%s v%d, v%d, v%d" % (op, t, t, u))


def kd(name, vgpr, sgpr=102):
    acc = (vgpr + 3) // 4 * 4
    return """.section .rodata,"a"
.p2align 6
.amdhsa_kernel %s
  .amdhsa_next_free_vgpr %d
  .amdhsa_next_free_sgpr %d
  .amdhsa_accum_offset %d
  .amdhsa_group_segment_fixed_size 0
  .amdhsa_kernarg_size 88
  .amdhsa_user_sgpr_count 2
  .amdhsa_user_sgpr_kernarg_segment_ptr 1
  .amdhsa_system_sgpr_workgroup_id_x 1
.end_amdhsa_kernel
""" % (name, vgpr, sgpr, acc)


def begin_kernel(a, name):
    a.raw(".text")
    a.raw(".globl %s" % name)
    a.raw(".p2align 8")
    a.raw(".type %s,@function" % name)
    a.label(name)
    a.hist = []
```

```python
from common import *
import os
def gen_k0(a):
    begin_kernel(a, "k0_kernel")
    a("""
    s_cmp_ge_u32 s2, 128
    s_cbranch_scc1 K0_pref
    s_load_dwordx2 s[4:5], s[0:1], 0
    s_load_dwordx2 s[6:7], s[0:1], 80
    v_lshrrev_b32 v1, 6, v0
    v_and_b32 v2, 63, v0
    v_mov_b32 v28, v1
    s_lshl_b32 s3, s2, 4
    v_add_u32 v1, s3, v1
    v_lshlrev_b32 v3, 10, v1
    v_lshl_add_u32 v3, v2, 4, v3
    s_lshl_b32 s3, s2, 10
    v_add_u32 v20, s3, v0
    v_lshlrev_b32 v20, 4, v20
    v_mov_b32 v24, 0
    v_mov_b32 v25, 0
    v_mov_b32 v26, 0
    v_mov_b32 v27, 0
    s_waitcnt lgkmcnt(0)
    """)
    srd(a, 8, 4, 5, 0, XN_BYTES)
    srd(a, 12, 6, 7, XN_OFF, XN_BYTES)
    srd(a, 16, 6, 7, KV_OFF, KV_BYTES)
    a("buffer_load_dwordx4 v[4:7], v3, s[8:11], 0 offen")
    a("buffer_store_dwordx4 v[24:27], v20, s[16:19], 0 offen")
    a("s_waitcnt vmcnt(1)")
    for i in range(4):
        a("v_lshlrev_b32 v%d, 16, v%d" % (8 + 2 * i, 4 + i))
        a("v_and_b32 v%d, 0xffff0000, v%d" % (9 + 2 * i, 4 + i))
    a("v_add_f32 v16, v8, v9")
    for i in range(2, 8):
        a("v_add_f32 v16, v16, v%d" % (8 + i))
    allreduce64(a, 16, 17)
    a("v_mul_f32 v16, 0x3b000000, v16")
    a("v_sub_f32 v18, v8, v16")
    a("v_mul_f32 v17, v18, v18")
    for i in range(1, 8):
        a("v_sub_f32 v18, v%d, v16" % (8 + i))
        a("v_fmac_f32 v17, v18, v18")
    allreduce64(a, 17, 18)
    a("v_mul_f32 v17, 0x3b000000, v17")
    a("v_cvt_pk_bf16_f32 v16, v16, v17")
    a("v_and_b32 v17, 0xffff0000, v16")
    a("v_lshlrev_b32 v16, 16, v16")
    a("v_add_f32 v17, 0x3727c5ac, v17")
    a("v_cvt_pk_bf16_f32 v17, v17, v17")
    a("v_lshlrev_b32 v17, 16, v17")
    a("v_sqrt_f32 v17, v17")
    a("v_cvt_pk_bf16_f32 v17, v17, v17")
    a("v_lshlrev_b32 v17, 16, v17")
    a("v_rcp_f32 v17, v17")
    for i in range(8):
        a("v_sub_f32 v%d, v%d, v16" % (8 + i, 8 + i))
    for i in range(4):
        a("v_cvt_pk_bf16_f32 v%d, v%d, v%d" % (4 + i, 8 + 2 * i, 9 + 2 * i))
    for i in range(4):
        a("v_lshlrev_b32 v%d, 16, v%d" % (8 + 2 * i, 4 + i))
        a("v_and_b32 v%d, 0xffff0000, v%d" % (9 + 2 * i, 4 + i))
    for i in range(8):
        a("v_mul_f32 v%d, v%d, v17" % (8 + i, 8 + i))
    for i in range(4):
        a("v_cvt_pk_bf16_f32 v%d, v%d, v%d" % (4 + i, 8 + 2 * i, 9 + 2 * i))
    a("v_lshrrev_b32 v8, 2, v2")
    a("v_and_b32 v9, 3, v2")
    a("v_lshlrev_b32 v8, 10, v8")
    a("v_lshl_add_u32 v8, v9, 8, v8")
    a("v_lshl_add_u32 v8, v28, 4, v8")
    a("ds_write_b128 v8, v[4:7]")
    a("v_lshlrev_b32 v9, 4, v0")
    a("s_lshl_b32 s3, s2, 14")
    a("s_waitcnt lgkmcnt(0)")
    a("s_barrier")
    a("ds_read_b128 v[4:7], v9")
    a("s_waitcnt lgkmcnt(0)")
    a("buffer_store_dwordx4 v[4:7], v9, s[12:15], s3 offen " + os.environ.get("K0ST", ""))
    a("s_branch K0_done")
    a.label("K0_pref")
    a("""
    s_cmp_ge_u32 s2, 256
    s_cbranch_scc1 K0_done
    s_load_dwordx2 s[4:5], s[0:1], 8
    s_load_dwordx2 s[6:7], s[0:1], 24
    s_load_dwordx4 s[8:11], s[0:1], 40
    s_load_dwordx2 s[12:13], s[0:1], 56
    s_sub_u32 s3, s2, 128
    s_lshl_b32 s3, s3, 10
    v_add_u32 v1, s3, v0
    v_lshlrev_b32 v1, 4, v1
    s_waitcnt lgkmcnt(0)
    """)
    srd(a, 16, 4, 5, 0, 512 * 3072)
    srd(a, 20, 6, 7, 0, 512 * 1024)
    srd(a, 24, 8, 9, 0, 512 * 2752)
    srd(a, 28, 10, 11, 0, 512 * 2752)
    srd(a, 32, 12, 13, 0, 1376 * 1024)
    for i, r in enumerate((16, 24, 28, 32, 20)):
        a("buffer_load_dwordx4 v[%d:%d], v1, s[%d:%d], 0 offen" % (4 + 4 * i, 7 + 4 * i, r, r + 3))
    a.label("K0_done")
    a("s_endpgm")
    return kd("k0_kernel", 32, 40)
```

```python
from common import *
import os
EXP = os.environ.get('K1EXP', '') + ',b2'

V_LANE, V_L15, V_G, V_A0, V_A1 = 1, 2, 3, 4, 5
V_DMA = 6
V_TR = 8
V_T0 = 12
V_AR = 16
V_ACC = 144
V_BR = 224
V_WRAW = 16
V_WPHI = 240
V_TMP = 48
K1_LDS = 163840


STAMP = 'stamp' in EXP
STF = ' ' + os.environ.get('K1ST', 'sc1')
_nst = [0]


def stamp(a):
    if not STAMP:
        return
    i = _nst[0]
    _nst[0] += 1
    a("s_memtime s[60:61]")
    a("s_waitcnt lgkmcnt(0)")
    a("s_mov_b32 s%d, s60" % (64 + i))


def stamp_out(a):
    if not STAMP:
        return
    n = _nst[0]
    a("s_memrealtime s[62:63]")
    a("s_waitcnt lgkmcnt(0)")
    a("s_sub_u32 s%d, s62, s90" % (64 + n))
    a("s_add_u32 s%d, s%d, s64" % (64 + n, 64 + n))
    n += 1
    a("s_cmp_lg_u32 s16, 0")
    a("s_cbranch_scc1 K1_done")
    srd(a, 56, 12, 13, 13 << 20, 1 << 20)
    a("s_lshl_b32 s3, s2, 7")
    for i in range(n):
        a("v_mov_b32 v1, s%d" % (64 + i))
        a("v_mov_b32 v2, %d" % (4 * i))
        a("buffer_store_dword v1, v2, s[56:59], s3 offen")


def acc(rt, u):
    return V_ACC + (u * 2 + rt) * 4


def k1_main(a, W, tfl, tag, wphi=False):
    n = 2 * W
    STG = 2048 * W
    SEG = 1024 * W
    pitch = 32 * W
    nd = 1 if W == 4 else 2
    NW = 2 + nd

    def issue(k, part=None):
        if part in (None, 0):
            if nd == 1:
                a("s_add_u32 m0, s20, %d" % (k * STG))
                a("buffer_load_dwordx4 v%d, s[24:27], s19 offen lds" % V_DMA)
            else:
                a("s_mov_b32 exec_hi, 0xff")
                a("s_add_u32 m0, s20, %d" % (k * STG))
                a("buffer_load_dwordx4 v%d, s[24:27], s19 offen lds" % V_DMA)
                a("s_add_u32 m0, s20, %d" % (k * STG + 640))
                a("buffer_load_dwordx4 v%d, s[24:27], s19 offen lds" % (V_DMA + 1))
                a("s_mov_b32 exec_hi, -1")
            a("s_lshl_b32 s52, s54, 10")
            a("s_add_u32 s54, s54, 1")
            a("s_and_b32 s54, s54, 15")
            a("s_mul_i32 s19, s54, s18")
        if part in (None, 1):
            a("buffer_load_dwordx4 v[%d:%d], v%d, s[28:31], s52 offen" % (V_AR + k * 8, V_AR + k * 8 + 3, V_A0))
        if part in (None, 2):
            a("buffer_load_dwordx4 v[%d:%d], v%d, s[28:31], s52 offen" % (V_AR + k * 8 + 4, V_AR + k * 8 + 7, V_A1))

    def bread(k, u, buf):
        seg, us = divmod(u, W)
        hi = (k * STG) >> 16
        off = (k * STG) & 0xffff
        for hh in range(2):
            if W == 4:
                base = V_TR + us if k < 8 else 240 + us
                o = (k % 8) * STG + seg * SEG + hh * 8 * pitch
            else:
                base = (V_TR, V_TR + 1, V_TR + 2)[k // 6]
                o = (k % 6) * STG + seg * SEG + hh * 8 * pitch + us * 32
            assert o < 65536
            a("ds_read_b64_tr_b16 v[%d:%d], v%d offset:%d" % (V_BR + buf * 4 + hh * 2, V_BR + buf * 4 + hh * 2 + 1, base, o))

    D = int(os.environ.get('K1D', '4'))

    def step(k, extra):
        last = k == 15
        B2 = 'b2' in EXP
        if B2:
            top = min(k + D - 1, 15)
            if k % 2 == 0 and k < 15:
                need_g = min(k + 2, 15)
                a("s_waitcnt vmcnt(%d)" % (2 + (top - need_g) * NW + extra))
                a("s_barrier")
            else:
                a("s_waitcnt vmcnt(%d)" % ((top - k) * NW + extra))
        elif k < 15:
            ng = min(k + D - 1, 15) - (k + 1)
            a("s_waitcnt vmcnt(%d)" % (2 + ng * NW + extra))
            a("s_barrier")
        else:
            a("s_waitcnt vmcnt(%d)" % extra)
        for u in range(n):
            gu = k * n + u
            if k + D <= 15 and u in (1, 3, 5):
                issue(k + D, (u - 1) // 2)
            nxt = u + 2
            if nxt < n:
                bread(k, nxt, (gu + 2) % 4)
                pend = 4
            elif not last:
                bread(k + 1, nxt - n, (gu + 2) % 4)
                pend = 4
            else:
                pend = 2 if u + 1 < n else 0
            a("s_waitcnt lgkmcnt(%d)" % pend)
            b = V_BR + (gu % 4) * 4
            for rt in range(2):
                x = V_AR + k * 8 + rt * 4
                c = acc(rt, u)
                if tfl[u]:
                    a("v_mfma_f32_16x16x32_bf16 v[%d:%d], v[%d:%d], v[%d:%d], v[%d:%d]" % (c, c + 3, b, b + 3, x, x + 3, c, c + 3))
                else:
                    a("v_mfma_f32_16x16x32_bf16 v[%d:%d], v[%d:%d], v[%d:%d], v[%d:%d]" % (c, c + 3, x, x + 3, b, b + 3, c, c + 3))

    _nst[0] = 1
    stamp(a)
    a("s_and_b32 s54, s14, 3")
    a("s_lshl_b32 s54, s54, 1")
    a("s_add_u32 s54, s54, s15")
    a("s_lshl_b32 s54, s54, 1")
    a("s_and_b32 s54, s54, 0")
    a("s_mul_i32 s19, s54, s18")
    if wphi:
        a("s_lshl_b32 s3, s16, 10")
        a("s_add_u32 m0, s3, 131072")
        a("buffer_load_dwordx4 v244, s[40:43], s3 offen lds")
    for k in range(D):
        issue(k)
    if W == 4:
        for u in range(4):
            a("v_add_u32 v%d, 0x10000, v%d" % (240 + u, V_TR + u))
    else:
        a("v_add_u32 v%d, %d, v%d" % (V_TR + 1, 6 * STG, V_TR))
        a("v_add_u32 v%d, %d, v%d" % (V_TR + 2, 12 * STG, V_TR))
    for i in range(n * 8):
        a("v_mov_b32 v%d, 0" % (V_ACC + i))
    a("s_waitcnt vmcnt(%d)" % (2 + (D - 1) * NW))
    a("s_barrier")
    bread(0, 0, 0)
    bread(0, 1, 1)
    extra = 0
    stamp(a)
    for k in range(16):
        step(k, extra)
        if k % 2 == 1:
            stamp(a)
    a("s_waitcnt vmcnt(0)")


def unpack(a, dst, pk, n):
    for i in range(n):
        a("v_lshlrev_b32 v%d, 16, v%d" % (dst + 2 * i, pk + i))
        a("v_and_b32 v%d, 0xffff0000, v%d" % (dst + 2 * i + 1, pk + i))


def pack(a, pk, src, n):
    for i in range(n):
        a("v_cvt_pk_bf16_f32 v%d, v%d, v%d" % (pk + i, src + 2 * i, src + 2 * i + 1))


def xg_reduce2(a, A, B, T, op):
    a("v_permlane32_swap_b32 v%d, v%d" % (A, B))
    a("%s v%d, v%d, v%d" % (op, A, A, B))
    a("v_mov_b32 v%d, v%d" % (T, A))
    a("v_permlane16_swap_b32 v%d, v%d" % (A, T))
    a("%s v%d, v%d, v%d" % (op, A, A, T))
    a("v_mov_b32 v%d, v%d" % (B, A))
    a("v_permlane32_swap_b32 v%d, v%d" % (A, B))


def lane_off(a, r):
    a("v_lshrrev_b32 v%d, 1, v3" % r)
    a("v_lshl_add_u32 v%d, v%d, 4, v2" % (r, r))
    a("v_lshlrev_b32 v%d, 4, v%d" % (r, r))
    a("v_and_b32 v%d, 1, v3" % (r + 1))
    a("v_lshl_add_u32 v%d, v%d, 3, v%d" % (r, r + 1, r))


def epi_gu(a, W):
    t = V_TMP
    for u in range(W):
        for rt in range(2):
            G, U = acc(rt, u), acc(rt, W + u)
            pack(a, t, G, 2)
            pack(a, t + 2, U, 2)
            unpack(a, t + 4, t, 2)
            unpack(a, t + 8, t + 2, 2)
            for i in range(4):
                a("v_mul_f32 v%d, 0x%x, v%d" % (t + 12 + i, NLOG2E, t + 4 + i))
            for i in range(4):
                a("v_exp_f32 v%d, v%d" % (t + 12 + i, t + 12 + i))
            for i in range(4):
                a("v_add_f32 v%d, 1.0, v%d" % (t + 12 + i, t + 12 + i))
            for i in range(4):
                a("v_rcp_f32 v%d, v%d" % (t + 12 + i, t + 12 + i))
            for i in range(4):
                a("v_mul_f32 v%d, v%d, v%d" % (t + 12 + i, t + 12 + i, t + 4 + i))
            pack(a, t, t + 12, 2)
            unpack(a, t + 4, t, 2)
            for i in range(4):
                a("v_mul_f32 v%d, v%d, v%d" % (t + 4 + i, t + 4 + i, t + 8 + i))
            o = t + 16 + ((u * 2 + rt) % 4) * 2
            pack(a, o, t + 4, 2)
            a(("buffer_store_dwordx2 v[%d:%d], v%d, s[32:35], 0 offen offset:%d" + STF) % (o, o + 1, V_T0 + rt, u * 512))


def wphi_combine(a, nh):
    a("v_lshrrev_b32 v16, 2, v2")
    a("v_lshl_add_u32 v16, v3, 2, v16")
    a("v_lshlrev_b32 v16, 5, v16")
    a("v_and_b32 v17, 3, v1")
    a("v_lshl_add_u32 v16, v17, 3, v16")
    a("v_add_u32 v16, 131072, v16")
    for hh in range(nh):
        a("ds_read_b64_tr_b16 v[%d:%d], v16 offset:%d" % (V_WPHI + 2 * hh, V_WPHI + 2 * hh + 1, hh * 512))
    a("s_waitcnt lgkmcnt(0)")


def softmax2(a, u, src, t):
    P = [t + 4, t + 20]
    for rt in range(2):
        pack(a, t + 2 * rt, src[rt], 2)
    for rt in range(2):
        a("v_mfma_f32_16x16x16_bf16 v[%d:%d], v[%d:%d], v[%d:%d], 0" % (P[rt], P[rt] + 3, V_WPHI + 2 * u, V_WPHI + 2 * u + 1, t + 2 * rt, t + 2 * rt + 1))
    for rt in range(2):
        pack(a, t + 2 * rt, P[rt], 2)
    for rt in range(2):
        unpack(a, P[rt], t + 2 * rt, 2)
    for rt in range(2):
        p = P[rt]
        a("v_max3_f32 v%d, v%d, v%d, v%d" % (p + 4, p, p + 1, p + 2))
        a("v_min3_f32 v%d, v%d, v%d, v%d" % (p + 5, p, p + 1, p + 2))
    for rt in range(2):
        p = P[rt]
        a("v_max_f32 v%d, v%d, v%d" % (p + 4, p + 4, p + 3))
        a("v_max_f32 v%d, -v%d, -v%d" % (p + 5, p + 5, p + 3))

    def red(op):
        for rt in range(2):
            a("v_permlane32_swap_b32 v%d, v%d" % (P[rt] + 4, P[rt] + 5))
        for rt in range(2):
            a("%s v%d, v%d, v%d" % (op, P[rt] + 4, P[rt] + 4, P[rt] + 5))
        for rt in range(2):
            a("v_mov_b32 v%d, v%d" % (P[rt] + 6, P[rt] + 4))
        for rt in range(2):
            a("v_permlane16_swap_b32 v%d, v%d" % (P[rt] + 4, P[rt] + 6))
        for rt in range(2):
            a("%s v%d, v%d, v%d" % (op, P[rt] + 4, P[rt] + 4, P[rt] + 6))
        for rt in range(2):
            a("v_mov_b32 v%d, v%d" % (P[rt] + 5, P[rt] + 4))
        for rt in range(2):
            a("v_permlane32_swap_b32 v%d, v%d" % (P[rt] + 4, P[rt] + 5))

    red("v_max_f32")
    for rt in range(2):
        p = P[rt]
        a("v_mul_f32 v%d, s53, v%d" % (p + 4, p + 4))
        a("v_mul_f32 v%d, s53, v%d" % (p + 5, p + 5))
    for rt in range(2):
        p = P[rt]
        for i in range(4):
            a("v_fma_f32 v%d, v%d, s53, -v%d" % (p + 8 + i, p + i, p + 4))
            a("v_fma_f32 v%d, -v%d, s53, -v%d" % (p + 12 + i, p + i, p + 5))
    for rt in range(2):
        for i in range(8):
            a("v_exp_f32 v%d, v%d" % (P[rt] + 8 + i, P[rt] + 8 + i))
    for rt in range(2):
        p = P[rt]
        a("v_add_f32 v%d, v%d, v%d" % (p + 4, p + 8, p + 9))
        a("v_add_f32 v%d, v%d, v%d" % (p + 5, p + 12, p + 13))
        a("v_add_f32 v%d, v%d, v%d" % (p + 6, p + 10, p + 11))
        a("v_add_f32 v%d, v%d, v%d" % (p + 7, p + 14, p + 15))
    for rt in range(2):
        p = P[rt]
        a("v_add_f32 v%d, v%d, v%d" % (p + 4, p + 4, p + 6))
        a("v_add_f32 v%d, v%d, v%d" % (p + 5, p + 5, p + 7))
    red("v_add_f32")
    for rt in range(2):
        a("v_rcp_f32 v%d, v%d" % (P[rt] + 4, P[rt] + 4))
        a("v_rcp_f32 v%d, v%d" % (P[rt] + 5, P[rt] + 5))
    for rt in range(2):
        p = P[rt]
        for i in range(4):
            a("v_mul_f32 v%d, v%d, v%d" % (p + 8 + i, p + 8 + i, p + 4))
            a("v_mul_f32 v%d, v%d, v%d" % (p + 12 + i, p + 12 + i, p + 5))
    for rt in range(2):
        pack(a, t + 40 + rt * 4, P[rt] + 8, 4)


def epi_q(a):
    t = V_TMP
    wphi_combine(a, 8)
    a("s_mov_b32 s53, 0x%x" % LOG2E)
    for u in range(8):
        tt = t + (u % 2) * 48
        softmax2(a, u, [acc(0, u), acc(1, u)], tt)
        for rt in range(2):
            o = tt + 40 + rt * 4
            a(("buffer_store_dwordx2 v[%d:%d], v%d, s[32:35], 0 offen offset:%d" + STF) % (o, o + 1, V_T0 + rt + 2 * (u >> 2), (u & 3) * 1024))
            a(("buffer_store_dwordx2 v[%d:%d], v%d, s[32:35], 0 offen offset:%d" + STF) % (o + 2, o + 3, V_T0 + rt + 2 * (u >> 2), (u & 3) * 1024 + 512))


def epi_kv(a):
    t = V_TMP
    PP, PM, VV, ON, ID = t + 48, t + 52, t + 56, t + 60, t + 64
    wphi_combine(a, 4)
    a("s_mov_b32 s53, 0x%x" % LOG2E)
    for i in range(4):
        a("v_mov_b32 v%d, 0x3f803f80" % (ON + i))
    a("v_lshlrev_b32 v%d, 2, v3" % (t + 66))
    a("v_sub_u32 v%d, v2, v%d" % (t + 66, t + 66))
    for j in range(2):
        a("v_mov_b32 v%d, 0" % (ID + j))
        a("v_mov_b32 v%d, 0x3f80" % (t + 67))
        a("v_cmp_eq_u32 vcc, %d, v%d" % (2 * j, t + 66))
        a("v_cndmask_b32 v%d, v%d, v%d, vcc" % (ID + j, ID + j, t + 67))
        a("v_mov_b32 v%d, 0x3f800000" % (t + 67))
        a("v_cmp_eq_u32 vcc, %d, v%d" % (2 * j + 1, t + 66))
        a("v_cndmask_b32 v%d, v%d, v%d, vcc" % (ID + j, ID + j, t + 67))
    for u in range(4):
        softmax2(a, u, [acc(0, u), acc(1, u)], t)
        for rt in range(2):
            o = t + 40 + rt * 4
            a("v_mfma_f32_16x16x16_bf16 v[%d:%d], v[%d:%d], v[%d:%d], 0" % (t + 4 + rt * 8, t + 7 + rt * 8, o, o + 1, ID, ID + 1))
            a("v_mfma_f32_16x16x16_bf16 v[%d:%d], v[%d:%d], v[%d:%d], 0" % (t + 8 + rt * 8, t + 11 + rt * 8, o + 2, o + 3, ID, ID + 1))
        for rt in range(2):
            pack(a, VV + 2 * rt, acc(rt, 4 + u), 2)
        for rt in range(2):
            pack(a, PP + 2 * rt, t + 4 + rt * 8, 2)
            pack(a, PM + 2 * rt, t + 8 + rt * 8, 2)
        a("v_mfma_f32_16x16x32_bf16 v[%d:%d], v[%d:%d], v[%d:%d], 0" % (t, t + 3, PP, PP + 3, VV, VV + 3))
        a("v_mfma_f32_16x16x32_bf16 v[%d:%d], v[%d:%d], v[%d:%d], 0" % (t + 4, t + 7, PM, PM + 3, VV, VV + 3))
        a("v_mfma_f32_16x16x32_bf16 v[%d:%d], v[%d:%d], v[%d:%d], 0" % (t + 8, t + 11, PP, PP + 3, ON, ON + 3))
        a("v_mfma_f32_16x16x32_bf16 v[%d:%d], v[%d:%d], v[%d:%d], 0" % (t + 12, t + 15, PM, PM + 3, ON, ON + 3))
        for q in range(4):
            a("ds_write_b128 v%d, v[%d:%d] offset:%d" % (V_T0, t + 4 * q, t + 4 * q + 3, (u * 4 + q) * 1024))
    a("s_waitcnt lgkmcnt(0)")
    a("s_barrier")
    a("v_lshrrev_b32 v%d, 7, v0" % t)
    a("v_lshlrev_b32 v%d, 12, v%d" % (t, t))
    a("v_and_b32 v%d, 0x7f, v0" % (t + 1))
    a("v_lshl_add_u32 v%d, v%d, 4, v%d" % (t, t + 1, t))
    a("v_add_u32 v%d, 0x10000, v%d" % (t + 1, t))
    R = t + 4
    for w in range(8):
        a("ds_read_b128 v[%d:%d], v%d offset:%d" % (R + w * 8, R + w * 8 + 3, t + (w >> 2), (w & 3) * 16384))
        a("ds_read_b128 v[%d:%d], v%d offset:%d" % (R + w * 8 + 4, R + w * 8 + 7, t + (w >> 2), (w & 3) * 16384 + 2048))
    a("v_lshlrev_b32 v%d, 4, v0" % (t + 2))
    a("v_lshrrev_b32 v%d, 6, v0" % (t + 3))
    a("v_lshlrev_b32 v%d, 6, v%d" % (t + 3, t + 3))
    a("v_lshl_add_u32 v%d, v3, 4, v%d" % (t + 3, t + 3))
    a("s_lshl_b32 s23, s14, 13")
    a("s_sub_u32 s23, s23, 4*8192")
    a("s_lshr_b32 s51, s23, 4")
    a("s_add_u32 s51, s51, 65536")
    a("s_waitcnt lgkmcnt(0)")
    for w in range(1, 8):
        for i in range(8):
            a("v_add_f32 v%d, v%d, v%d" % (R + i, R + i, R + w * 8 + i))
    for i in range(4):
        a("buffer_atomic_add_f32 v%d, v%d, s[36:39], s23 offen offset:%d" % (R + i, t + 2, i * 4))
    a("s_mov_b32 exec_lo, 0x00010001")
    a("s_mov_b32 exec_hi, 0x00010001")
    for i in range(4):
        a("buffer_atomic_add_f32 v%d, v%d, s[36:39], s51 offen offset:%d" % (R + 4 + i, t + 3, i * 4))


def gen_k1(a):
    begin_kernel(a, "k1_kernel")
    a("""
    s_cmp_ge_u32 s2, 256
    s_cbranch_scc1 K1_done
    s_memtime s[60:61]
    s_memrealtime s[62:63]
    s_waitcnt lgkmcnt(0)
    s_mov_b32 s64, s60
    s_mov_b32 s90, s62
    s_load_dwordx4 s[4:7], s[0:1], 8
    s_load_dwordx4 s[8:11], s[0:1], 40
    s_load_dwordx2 s[12:13], s[0:1], 80
    v_lshrrev_b32 v12, 6, v0
    v_and_b32 v1, 63, v0
    v_readfirstlane_b32 s16, v12
    v_and_b32 v2, 15, v1
    v_lshrrev_b32 v3, 4, v1
    v_mov_b32 v244, 0
    s_and_b32 s14, s2, 7
    s_lshl_b32 s14, s14, 2
    s_lshr_b32 s15, s2, 3
    s_and_b32 s3, s15, 3
    s_add_u32 s14, s14, s3
    s_lshr_b32 s15, s15, 2
    s_lshl_b32 s3, s15, 8
    s_lshl_b32 s46, s16, 5
    s_add_u32 s46, s46, s3
    s_lshl_b32 s3, s46, 10
    v_lshlrev_b32 v4, 4, v1
    v_add_u32 v4, s3, v4
    v_add_u32 v5, 0x4000, v4
    s_lshr_b32 s47, s16, 2
    s_and_b32 s48, s16, 3
    s_waitcnt lgkmcnt(0)
    """)
    srd(a, 28, 12, 13, XN_OFF, XN_BYTES)
    srd(a, 36, 12, 13, KV_OFF, KV_BYTES)
    srd(a, 40, 6, 7, 0, 16384)
    a("""
    s_cmp_lt_u32 s14, 12
    s_cbranch_scc0 K1_gu_setup
    s_movk_i32 s17, 3072
    s_cmp_lt_u32 s14, 4
    s_cbranch_scc0 K1_kv_off
    s_lshl_b32 s3, s14, 8
    s_lshl_b32 s49, s47, 7
    s_add_u32 s3, s3, s49
    s_lshl_b32 s50, s14, 3
    s_branch K1_qkv_srd
K1_kv_off:
    s_sub_u32 s3, s14, 4
    s_lshl_b32 s50, s3, 2
    s_lshl_b32 s3, s3, 7
    s_add_u32 s3, s3, 1024
    s_lshl_b32 s49, s47, 10
    s_add_u32 s3, s3, s49
K1_qkv_srd:
    s_add_u32 s24, s4, s3
    s_addc_u32 s25, s5, 0
    s_sub_u32 s26, 0x180000, s3
    s_mov_b32 s27, 0x00020000
    s_lshl_b32 s3, s50, 9
    v_lshlrev_b32 v13, 4, v1
    v_add_u32 v244, s3, v13
    """)
    a("""
    s_branch K1_w4_setup
K1_gu_setup:
    s_movk_i32 s17, 2752
    s_sub_u32 s3, s14, 12
    s_mul_i32 s49, s3, 5
    s_lshl_b32 s50, s3, 2
    s_add_u32 s50, s50, 6
    s_cmp_lt_u32 s3, 6
    s_cselect_b32 s50, s49, s50
    s_lshl_b32 s3, s50, 5
    s_cmp_eq_u32 s47, 0
    s_cselect_b32 s24, s8, s10
    s_cselect_b32 s25, s9, s11
    s_add_u32 s24, s24, s3
    s_addc_u32 s25, s25, 0
    s_sub_u32 s26, 0x158000, s3
    s_mov_b32 s27, 0x00020000
    s_cmp_lt_u32 s14, 18
    s_cbranch_scc1 K1_w5_setup
K1_w4_setup:
    s_lshl_b32 s18, s17, 5
    v_lshrrev_b32 v13, 3, v1
    s_lshl_b32 s3, s48, 3
    v_add_u32 v13, s3, v13
    v_and_b32 v14, 7, v1
    v_and_b32 v15, 0x13, v13
    v_and_b32 v6, 8, v13
    v_lshrrev_b32 v6, 1, v6
    v_or_b32 v15, v15, v6
    v_and_b32 v6, 4, v13
    v_lshlrev_b32 v6, 1, v6
    v_or_b32 v15, v15, v6
    v_bfe_u32 v13, v13, 1, 2
    v_lshrrev_b32 v6, 1, v14
    v_xor_b32 v6, v6, v13
    v_and_b32 v14, 1, v14
    v_lshl_or_b32 v6, v6, 1, v14
    v_lshlrev_b32 v6, 4, v6
    v_mad_u32_u24 v6, v15, s17, v6
    s_lshl_b32 s20, s47, 12
    s_lshl_b32 s3, s48, 10
    s_add_u32 s20, s20, s3
    v_lshrrev_b32 v13, 2, v2
    v_and_b32 v14, 1, v3
    v_lshrrev_b32 v15, 1, v3
    v_lshlrev_b32 v15, 4, v15
    v_lshl_add_u32 v15, v14, 2, v15
    v_add_u32 v15, v15, v13
    v_lshrrev_b32 v13, 1, v13
    v_lshl_add_u32 v13, v14, 1, v13
    v_and_b32 v14, 3, v1
    v_lshlrev_b32 v14, 3, v14
    v_lshl_add_u32 v14, v15, 7, v14
    """)
    for u in range(4):
        a("v_xor_b32 v15, %d, v13" % u)
        a("v_lshl_add_u32 v%d, v15, 5, v14" % (V_TR + u))
    a("""
    s_cmp_lt_u32 s14, 4
    s_cbranch_scc1 K1_A_go
    s_cmp_lt_u32 s14, 12
    s_cbranch_scc0 K1_A_go
    """)
    k1_main(a, 4, [True] * 4 + [False] * 4, "B", True)
    a("s_lshl_b32 s3, s16, 14")
    a("v_lshlrev_b32 v%d, 4, v1" % V_T0)
    a("v_add_u32 v%d, s3, v%d" % (V_T0, V_T0))
    a("s_barrier")
    if 'noepi' not in EXP and 'nokv' not in EXP:
        epi_kv(a)
    a("s_mov_b64 exec, -1")
    stamp(a); stamp_out(a)
    a("s_branch K1_done")
    a.label("K1_A_go")
    k1_main(a, 4, [True] * 8, "A", True)
    a("s_cmp_lt_u32 s14, 4")
    a("s_cbranch_scc0 K1_gu4_epi")
    srd(a, 32, 12, 13, PHIQ_OFF, PHIQ_BYTES)
    lane_off(a, V_T0)
    a("s_lshl_b32 s3, s46, 11")
    a("s_lshl_b32 s49, s14, 13")
    a("s_add_u32 s3, s3, s49")
    a("v_add_u32 v%d, s3, v%d" % (V_T0, V_T0))
    a("v_add_u32 v%d, 0x8000, v%d" % (V_T0 + 1, V_T0))
    a("v_add_u32 v%d, 0x1000, v%d" % (V_T0 + 2, V_T0))
    a("v_add_u32 v%d, 0x9000, v%d" % (V_T0 + 3, V_T0))
    if 'noepi' not in EXP and 'noq' not in EXP:
        epi_q(a)
    sv = _nst[0]
    stamp(a); stamp_out(a)
    _nst[0] = sv
    a("s_branch K1_done")

    def gu_addr():
        srd(a, 32, 12, 13, H_OFF, H_BYTES)
        lane_off(a, V_T0)
        a("s_mul_i32 s3, s46, 2752")
        a("s_lshl_b32 s49, s50, 9")
        a("s_add_u32 s3, s3, s49")
        a("v_add_u32 v%d, s3, v%d" % (V_T0, V_T0))
        a("v_add_u32 v%d, %d, v%d" % (V_T0 + 1, 43 * 1024, V_T0))

    a.label("K1_gu4_epi")
    gu_addr()
    if 'noepi' not in EXP:
        epi_gu(a, 4)
    stamp(a); stamp_out(a)
    a("s_branch K1_done")
    a.label("K1_w5_setup")
    a("""
    s_lshl_b32 s18, s17, 5
    s_mul_i32 s3, s48, 80
    v_add_u32 v13, s3, v1
    """)
    for i in range(2):
        if i:
            a("v_add_u32 v13, 40, v13")
        a("""
        v_mul_u32_u24 v14, 205, v13
        v_lshrrev_b32 v14, 11, v14
        v_mul_u32_u24 v15, 10, v14
        v_sub_u32 v15, v13, v15
        v_and_b32 v16, 0x13, v14
        v_and_b32 v17, 8, v14
        v_lshrrev_b32 v17, 1, v17
        v_or_b32 v16, v16, v17
        v_and_b32 v17, 4, v14
        v_lshlrev_b32 v17, 1, v17
        v_or_b32 v16, v16, v17
        v_lshlrev_b32 v15, 4, v15
        """)
        a("v_mad_u32_u24 v%d, v16, s17, v15" % (V_DMA + i))
    a("""
    s_mul_i32 s20, s47, 5120
    s_mul_i32 s3, s48, 1280
    s_add_u32 s20, s20, s3
    v_lshrrev_b32 v13, 2, v2
    v_and_b32 v14, 1, v3
    v_lshrrev_b32 v15, 1, v3
    v_lshlrev_b32 v15, 4, v15
    v_lshl_add_u32 v15, v14, 2, v15
    v_add_u32 v15, v15, v13
    v_mul_u32_u24 v15, 160, v15
    v_and_b32 v14, 3, v1
    v_lshl_add_u32 v8, v14, 3, v15
    """)
    k1_main(a, 5, [True] * 10, "C")
    gu_addr()
    if 'noepi' not in EXP:
        epi_gu(a, 5)
    stamp(a); stamp_out(a)
    a.label("K1_done")
    a("s_endpgm")
    return kd("k1_kernel", 256, 100)
```

```python
from common import *
from k1 import pack, unpack
import os
STAMP2 = 'stamp' in os.environ.get('K2EXP', '')
_n2 = [1]


def stamp(a):
    if not STAMP2:
        return
    i = _n2[0]
    _n2[0] += 1
    a("s_memtime s[60:61]")
    a("s_waitcnt lgkmcnt(0)")
    a("s_mov_b32 s%d, s60" % (64 + i))

REG = 17408
K2_LDS = 8 * REG
V_ACC = 64
V_AR = 128
V_BF = 32
V_TR = 8
V_DMA = 6
V_AO = 12
V_T = 192


def acc(ct, rt):
    return V_ACC + (ct * 4 + rt) * 4


def dma4(a, slot, skoff, perm):
    for i in range(4):
        c = (16 * (i >> 1) + 4 * (i & 1)) * 1024 if perm else i * 8 * 1024
        a("s_add_u32 s30, s%d, %d" % (skoff, c))
        a("s_add_u32 m0, s20, %d" % (slot * 4096 + i * 1024))
        a("buffer_load_dwordx4 v%d, s[24:27], s30 offen lds" % V_DMA)


def bfrags(a, slot, hoff):
    for u in range(4):
        for hh in range(2):
            a("ds_read_b64_tr_b16 v[%d:%d], v%d offset:%d" % (V_BF + u * 4 + hh * 2, V_BF + u * 4 + hh * 2 + 1, V_TR + u, slot * 4096 + hh * hoff))


def gen_k2(a):
    begin_kernel(a, "k2_kernel")
    a("""
    s_cmp_ge_u32 s2, 256
    s_cbranch_scc1 K2_done
    s_memtime s[60:61]
    s_waitcnt lgkmcnt(0)
    s_mov_b32 s64, s60
    s_load_dwordx2 s[4:5], s[0:1], 0
    s_load_dwordx2 s[6:7], s[0:1], 24
    s_load_dwordx4 s[8:11], s[0:1], 56
    s_load_dwordx2 s[12:13], s[0:1], 80
    v_lshrrev_b32 v12, 6, v0
    v_and_b32 v1, 63, v0
    v_readfirstlane_b32 s16, v12
    v_and_b32 v2, 15, v1
    v_lshrrev_b32 v3, 4, v1
    s_and_b32 s14, s2, 7
    s_lshl_b32 s14, s14, 2
    s_lshr_b32 s15, s2, 3
    s_and_b32 s3, s15, 3
    s_add_u32 s14, s14, s3
    s_lshr_b32 s15, s15, 2
    s_lshl_b32 s14, s14, 6
    s_lshl_b32 s15, s15, 7
    s_and_b32 s17, s16, 3
    s_mul_i32 s20, s16, %d
    """ % REG)
    a("""
    v_lshrrev_b32 v13, 3, v1
    v_and_b32 v14, 7, v1
    v_bfe_u32 v15, v13, 1, 2
    v_lshrrev_b32 v6, 1, v14
    v_xor_b32 v6, v6, v15
    v_and_b32 v14, 1, v14
    v_lshl_or_b32 v6, v6, 1, v14
    v_lshlrev_b32 v6, 4, v6
    v_add_u32 v6, s15, v6
    v_lshrrev_b32 v16, 2, v2
    v_and_b32 v17, 1, v3
    v_lshrrev_b32 v18, 1, v16
    v_lshl_add_u32 v18, v17, 1, v18
    v_and_b32 v19, 3, v1
    v_lshlrev_b32 v19, 3, v19
    v_add_u32 v19, s20, v19
    s_waitcnt lgkmcnt(0)
    s_cmp_lt_u32 s16, 4
    s_cbranch_scc1 K2_opart
    """)
    for i in range(64):
        a("v_mov_b32 v%d, 0" % (V_ACC + i))
    srd(a, 24, 8, 9, 0, 1376 * 1024)
    srd(a, 32, 12, 13, H_OFF, H_BYTES)
    a("""
    v_and_b32 v14, 3, v13
    v_lshrrev_b32 v15, 2, v13
    v_lshl_add_u32 v14, v15, 3, v14
    v_lshl_add_u32 v6, v14, 10, v6
    v_lshrrev_b32 v15, 1, v3
    v_lshlrev_b32 v15, 4, v15
    v_lshl_add_u32 v15, v17, 2, v15
    v_add_u32 v15, v15, v16
    v_lshl_add_u32 v19, v15, 7, v19
    """)
    for u in range(4):
        a("v_xor_b32 v15, %d, v18" % u)
        a("v_lshl_add_u32 v%d, v15, 5, v19" % (V_TR + u))
    a("s_mul_i32 s3, s14, 2752")
    a("v_lshlrev_b32 v15, 4, v1")
    a("v_add_u32 v%d, s3, v15" % V_AO)
    for rt in range(1, 4):
        a("v_add_u32 v%d, %d, v%d" % (V_AO + rt, rt * 43 * 1024, V_AO))
    a("s_cmp_lt_u32 s17, 3")
    a("s_cselect_b32 s42, 11, 10")
    a("s_lshr_b32 s41, s15, 7")
    a("s_lshr_b32 s3, s14, 6")
    a("s_and_b32 s3, s3, 3")
    a("s_mul_i32 s3, s3, 3")
    a("s_add_u32 s41, s41, s3")
    a("s_cmp_ge_u32 s41, s42")
    a("s_cselect_b32 s3, s42, 0")
    a("s_sub_u32 s41, s41, s3")
    a("s_mov_b32 s41, 0")
    a("s_lshl_b32 s21, s41, 2")
    a("s_add_u32 s21, s21, s17")
    a("s_lshl_b32 s22, s21, 15")
    a("s_lshl_b32 s21, s21, 10")

    def h_issue(i):
        slot = i % 4
        for rt in range(4):
            r = V_AR + slot * 16 + rt * 4
            a("buffer_load_dwordx4 v[%d:%d], v%d, s[32:35], s21 offen" % (r, r + 3, V_AO + rt))
        dma4(a, slot, 22, True)
        a("s_add_u32 s41, s41, 1")
        a("s_cmp_ge_u32 s41, s42")
        a("s_cselect_b32 s41, 0, s41")
        a("s_lshl_b32 s21, s41, 2")
        a("s_add_u32 s21, s21, s17")
        a("s_lshl_b32 s22, s21, 15")
        a("s_lshl_b32 s21, s21, 10")

    def h_step(i, do_issue, vm):
        slot = i % 4
        if do_issue:
            h_issue(i + 3)
        a("s_waitcnt vmcnt(%d)" % vm)
        bfrags(a, slot, 1024)
        for ct in range(4):
            a("s_waitcnt lgkmcnt(%d)" % (6 - 2 * ct))
            for rt in range(4):
                c = acc(ct, rt)
                x = V_AR + slot * 16 + rt * 4
                b = V_BF + ct * 4
                a("v_mfma_f32_16x16x32_bf16 v[%d:%d], v[%d:%d], v[%d:%d], v[%d:%d]" % (c, c + 3, b, b + 3, x, x + 3, c, c + 3))

    stamp(a)
    for i in range(3):
        h_issue(i)
    stamp(a)
    for i in range(7):
        h_step(i, True, 24)
        if i % 2 == 0:
            stamp(a)
    a("s_cmp_lt_u32 s17, 3")
    a("s_cbranch_scc0 K2_h_tailY")
    h_step(7, True, 24)
    h_step(8, False, 16)
    h_step(9, False, 8)
    h_step(10, False, 0)
    a("s_branch K2_part_out")
    a.label("K2_h_tailY")
    h_step(7, False, 16)
    h_step(8, False, 8)
    h_step(9, False, 0)
    a("s_branch K2_part_out")

    a.label("K2_opart")
    for i in range(64):
        a("v_mov_b32 v%d, 0" % (V_ACC + i))
    srd(a, 24, 6, 7, 0, 512 * 1024)
    srd(a, 32, 12, 13, PHIQ_OFF, PHIQ_BYTES)
    srd(a, 36, 12, 13, KV_OFF, KV_BYTES)
    a("""
    v_lshl_add_u32 v6, v13, 10, v6
    v_lshl_add_u32 v15, v3, 2, v16
    v_lshl_add_u32 v19, v15, 7, v19
    """)
    for u in range(4):
        a("v_xor_b32 v15, %d, v18" % u)
        a("v_lshl_add_u32 v%d, v15, 5, v19" % (V_TR + u))
    a("s_lshl_b32 s3, s14, 11")
    a("v_lshlrev_b32 v15, 4, v1")
    a("v_add_u32 v%d, s3, v15" % V_AO)
    for rt in range(1, 4):
        a("v_add_u32 v%d, %d, v%d" % (V_AO + rt, rt * 32 * 1024, V_AO))
    a("v_lshlrev_b32 v20, 4, v2")
    a("v_lshl_add_u32 v20, v3, 9, v20")
    a("v_lshlrev_b32 v21, 5, v3")
    a("s_lshr_b32 s43, s15, 7")
    a("s_and_b32 s43, s43, 0")
    a("s_mov_b32 s44, s43")
    KVZ = 192
    PH = 128

    def kvz_issue():
        base = KVZ
        a("s_lshl_b32 s3, s43, 2")
        a("s_add_u32 s3, s3, s17")
        a("s_lshl_b32 s22, s3, 12")
        a("s_lshl_b32 s23, s3, 8")
        a("s_add_u32 s23, s23, 65536")
        a("s_add_u32 s43, s43, 1")
        a("s_and_b32 s43, s43, 3")
        for hd in range(2):
            a("buffer_load_dwordx4 v[%d:%d], v20, s[36:39], s22 offen offset:%d" % (base + hd * 8, base + hd * 8 + 3, hd * 2048))
            a("buffer_load_dwordx4 v[%d:%d], v20, s[36:39], s22 offen offset:%d" % (base + hd * 8 + 4, base + hd * 8 + 7, hd * 2048 + 256))
            a("buffer_load_dwordx4 v[%d:%d], v21, s[36:39], s23 offen offset:%d" % (base + 16 + hd * 8, base + 16 + hd * 8 + 3, hd * 128))
            a("buffer_load_dwordx4 v[%d:%d], v21, s[36:39], s23 offen offset:%d" % (base + 16 + hd * 8 + 4, base + 16 + hd * 8 + 7, hd * 128 + 16))

    def ph_issue(i):
        base = PH + (i % 2) * 32
        a("s_lshl_b32 s3, s44, 2")
        a("s_add_u32 s3, s3, s17")
        a("s_lshl_b32 s21, s3, 11")
        a("s_lshl_b32 s40, s3, 15")
        a("s_add_u32 s44, s44, 1")
        a("s_and_b32 s44, s44, 3")
        for hd in range(2):
            for rt in range(4):
                r = base + (hd * 4 + rt) * 4
                a("buffer_load_dwordx4 v[%d:%d], v%d, s[32:35], s21 offen offset:%d" % (r, r + 3, V_AO + rt, hd * 1024))
        dma4(a, i, 40, False)

    def o_step(i, vm):
        base = PH + (i % 2) * 32
        t = 224
        OF = 48
        a("s_waitcnt vmcnt(%d)" % vm)
        bfrags(a, i, 2048)
        for hd in range(2):
            pack(a, t + hd * 8, KVZ + hd * 8, 4)
            pack(a, t + hd * 8 + 4, KVZ + 16 + hd * 8, 4)
        if i == 0:
            ph_issue(1)
        if i < 3:
            kvz_issue()
        for hd in range(2):
            kf = t + hd * 8
            for rt in range(4):
                p = base + (hd * 4 + rt) * 4
                n = t + 16 + rt * 4
                a("v_mfma_f32_16x16x32_bf16 v[%d:%d], v[%d:%d], v[%d:%d], 0" % (n, n + 3, kf, kf + 3, p, p + 3))
            for rt in range(4):
                p = base + (hd * 4 + rt) * 4
                d = 24 + (rt % 2) * 4
                a("v_mfma_f32_16x16x32_bf16 v[%d:%d], v[%d:%d], v[%d:%d], 0" % (d, d + 3, kf + 4, kf + 7, p, p + 3))
                n = t + 16 + rt * 4
                a("v_cvt_pk_bf16_f32 v%d, v%d, v%d" % (d, d, d))
                a("v_lshlrev_b32 v%d, 16, v%d" % (d, d))
                a("v_add_f32 v%d, 0x358637bd, v%d" % (d, d))
                a("v_cvt_pk_bf16_f32 v%d, v%d, v%d" % (d, d, d))
                a("v_lshlrev_b32 v%d, 16, v%d" % (d, d))
                a("v_rcp_f32 v%d, v%d" % (d, d))
                a("v_cvt_pk_bf16_f32 v%d, v%d, v%d" % (d + 1, n, n + 1))
                a("v_cvt_pk_bf16_f32 v%d, v%d, v%d" % (d + 2, n + 2, n + 3))
                unpack(a, n, d + 1, 2)
                for k in range(4):
                    a("v_mul_f32 v%d, v%d, v%d" % (n + k, n + k, d))
                pack(a, OF + rt * 4 + hd * 2, n, 2)
        a("s_waitcnt lgkmcnt(0)")
        for ct in range(4):
            for rt in range(4):
                c = acc(ct, rt)
                b = V_BF + ct * 4
                x = OF + rt * 4
                a("v_mfma_f32_16x16x32_bf16 v[%d:%d], v[%d:%d], v[%d:%d], v[%d:%d]" % (c, c + 3, b, b + 3, x, x + 3, c, c + 3))
        if i < 2:
            ph_issue(i + 2)

    _n2[0] = 1
    stamp(a)
    kvz_issue()
    ph_issue(0)
    stamp(a)
    o_step(0, 0)
    stamp(a)
    o_step(1, 12)
    stamp(a)
    o_step(2, 12)
    stamp(a)
    o_step(3, 0)
    stamp(a)

    a.label("K2_part_out")
    stamp(a)
    a("v_mul_u32_u24 v4, 272, v2")
    a("v_lshl_add_u32 v4, v3, 4, v4")
    a("v_add_u32 v4, s20, v4")
    for ct in range(4):
        for rt in range(4):
            c = acc(ct, rt)
            a("ds_write_b128 v4, v[%d:%d] offset:%d" % (c, c + 3, rt * 16 * 272 + ct * 64))
    srd(a, 24, 4, 5, 0, XN_BYTES)
    srd(a, 28, 10, 11, 0, XN_BYTES)
    a("""
    v_lshrrev_b32 v5, 3, v0
    v_and_b32 v6, 7, v0
    v_add_u32 v7, s14, v5
    v_lshlrev_b32 v7, 10, v7
    v_lshl_add_u32 v7, v6, 4, v7
    v_add_u32 v7, s15, v7
    buffer_load_dwordx4 v[8:11], v7, s[24:27], 0 offen
    v_mul_u32_u24 v5, 272, v5
    v_lshl_add_u32 v5, v6, 5, v5
    v_add_u32 v6, %d, v5
    s_waitcnt lgkmcnt(0)
    s_barrier
    """ % (4 * REG))
    stamp(a)
    for w in range(4):
        a("ds_read_b128 v[%d:%d], v5 offset:%d" % (64 + w * 8, 64 + w * 8 + 3, w * REG))
        a("ds_read_b128 v[%d:%d], v5 offset:%d" % (64 + w * 8 + 4, 64 + w * 8 + 7, w * REG + 16))
    for w in range(4):
        a("ds_read_b128 v[%d:%d], v6 offset:%d" % (96 + w * 8, 96 + w * 8 + 3, w * REG))
        a("ds_read_b128 v[%d:%d], v6 offset:%d" % (96 + w * 8 + 4, 96 + w * 8 + 7, w * REG + 16))
    a("s_waitcnt lgkmcnt(8)")
    for w in range(1, 4):
        for k in range(8):
            a("v_add_f32 v%d, v%d, v%d" % (64 + k, 64 + k, 64 + w * 8 + k))
    a("s_waitcnt lgkmcnt(0)")
    for w in range(1, 4):
        for k in range(8):
            a("v_add_f32 v%d, v%d, v%d" % (96 + k, 96 + k, 96 + w * 8 + k))
    pack(a, 72, 64, 4)
    unpack(a, 64, 72, 4)
    pack(a, 72, 96, 4)
    unpack(a, 96, 72, 4)
    for k in range(8):
        a("v_mul_f32 v%d, 0x%x, v%d" % (104 + k, NLOG2E, 96 + k))
    for k in range(8):
        a("v_exp_f32 v%d, v%d" % (104 + k, 104 + k))
    for k in range(8):
        a("v_add_f32 v%d, 1.0, v%d" % (104 + k, 104 + k))
    for k in range(8):
        a("v_rcp_f32 v%d, v%d" % (104 + k, 104 + k))
    for k in range(8):
        a("v_mul_f32 v%d, v%d, v%d" % (104 + k, 104 + k, 96 + k))
    pack(a, 72, 104, 4)
    unpack(a, 104, 72, 4)
    for k in range(8):
        a("v_mul_f32 v%d, v%d, v%d" % (64 + k, 64 + k, 104 + k))
    pack(a, 72, 64, 4)
    unpack(a, 64, 72, 4)
    a("s_waitcnt vmcnt(0)")
    unpack(a, 96, 8, 4)
    for k in range(8):
        a("v_add_f32 v%d, v%d, v%d" % (64 + k, 64 + k, 96 + k))
    pack(a, 72, 64, 4)
    a("buffer_store_dwordx4 v[72:75], v7, s[28:31], 0 offen")
    if STAMP2:
        stamp(a)
        a("s_and_b32 s3, s16, 3")
        a("s_cmp_lg_u32 s3, 0")
        a("s_cbranch_scc1 K2_done")
        srd(a, 56, 12, 13, 13 << 20, 1 << 20)
        a("s_lshl_b32 s3, s2, 7")
        a("s_lshl_b32 s62, s16, 4")
        a("s_add_u32 s3, s3, s62")
        for i in range(_n2[0]):
            a("v_mov_b32 v1, s%d" % (64 + i))
            a("v_mov_b32 v2, %d" % (4 * i))
            a("buffer_store_dword v1, v2, s[56:59], s3 offen")
    a.label("K2_done")
    a("s_endpgm")
    return kd("k2_kernel", 256, 100)
```

```python
from common import *
from k0 import gen_k0
from k1 import gen_k1, K1_LDS
from k2 import gen_k2, K2_LDS
import sys

def main():
    a = Asm()
    launches = []
    kds = []
    kds.append(gen_k0(a))
    launches.append("; @launch kernel=k0_kernel grid=(256,1,1) block=(1024,1,1) lds=16384")
    kds.append(gen_k1(a))
    launches.append("; @launch kernel=k1_kernel grid=(256,1,1) block=(512,1,1) lds=%d" % K1_LDS)
    kds.append(gen_k2(a))
    launches.append("; @launch kernel=k2_kernel grid=(256,1,1) block=(512,1,1) lds=%d" % K2_LDS)
    txt = HEADER + "\n".join(launches) + "\n" + '.amdgcn_target "amdgcn-amd-amdhsa--gfx950"\n' + a.text() + "".join(kds)
    out = sys.argv[1] if len(sys.argv) > 1 else OUT
    open(out, "w").write(txt)

main()
```

```python
from common import *
from k1 import pack, unpack
import os
STAMP2 = 'stamp' in os.environ.get('K2EXP', '')
_n2 = [1]


def stamp(a):
    if not STAMP2:
        return
    i = _n2[0]
    _n2[0] += 1
    a("s_memtime s[60:61]")
    a("s_waitcnt lgkmcnt(0)")
    a("s_mov_b32 s%d, s60" % (64 + i))

REG = 17408
K2_LDS = 8 * REG
V_ACC = 64
V_AR = 128
V_BF = 32
V_TR = 8
V_DMA = 6
V_AO = 12
V_T = 192


def acc(ct, rt):
    return V_ACC + (ct * 4 + rt) * 4


def dma4(a, slot, skoff, perm):
    for i in range(4):
        c = (16 * (i >> 1) + 4 * (i & 1)) * 1024 if perm else i * 8 * 1024
        a("s_add_u32 s30, s%d, %d" % (skoff, c))
        a("s_add_u32 m0, s20, %d" % (slot * 4096 + i * 1024))
        a("buffer_load_dwordx4 v%d, s[24:27], s30 offen lds" % V_DMA)


def bfrags(a, slot, hoff):
    for u in range(4):
        for hh in range(2):
            a("ds_read_b64_tr_b16 v[%d:%d], v%d offset:%d" % (V_BF + u * 4 + hh * 2, V_BF + u * 4 + hh * 2 + 1, V_TR + u, slot * 4096 + hh * hoff))


def gen_k2(a):
    begin_kernel(a, "k2_kernel")
    a("""
    s_cmp_ge_u32 s2, 256
    s_cbranch_scc1 K2_done
    s_memtime s[60:61]
    s_waitcnt lgkmcnt(0)
    s_mov_b32 s64, s60
    s_load_dwordx2 s[4:5], s[0:1], 0
    s_load_dwordx2 s[6:7], s[0:1], 24
    s_load_dwordx4 s[8:11], s[0:1], 56
    s_load_dwordx2 s[12:13], s[0:1], 80
    v_lshrrev_b32 v12, 6, v0
    v_and_b32 v1, 63, v0
    v_readfirstlane_b32 s16, v12
    v_and_b32 v2, 15, v1
    v_lshrrev_b32 v3, 4, v1
    s_and_b32 s14, s2, 7
    s_lshl_b32 s14, s14, 2
    s_lshr_b32 s15, s2, 3
    s_and_b32 s3, s15, 3
    s_add_u32 s14, s14, s3
    s_lshr_b32 s15, s15, 2
    s_lshl_b32 s14, s14, 6
    s_lshl_b32 s15, s15, 7
    s_and_b32 s17, s16, 3
    s_mul_i32 s20, s16, %d
    """ % REG)
    a("""
    v_lshrrev_b32 v13, 3, v1
    v_and_b32 v14, 7, v1
    v_bfe_u32 v15, v13, 1, 2
    v_lshrrev_b32 v6, 1, v14
    v_xor_b32 v6, v6, v15
    v_and_b32 v14, 1, v14
    v_lshl_or_b32 v6, v6, 1, v14
    v_lshlrev_b32 v6, 4, v6
    v_add_u32 v6, s15, v6
    v_lshrrev_b32 v16, 2, v2
    v_and_b32 v17, 1, v3
    v_lshrrev_b32 v18, 1, v16
    v_lshl_add_u32 v18, v17, 1, v18
    v_and_b32 v19, 3, v1
    v_lshlrev_b32 v19, 3, v19
    v_add_u32 v19, s20, v19
    s_waitcnt lgkmcnt(0)
    s_cmp_lt_u32 s16, 4
    s_cbranch_scc1 K2_opart
    """)
    for i in range(64):
        a("v_mov_b32 v%d, 0" % (V_ACC + i))
    srd(a, 24, 8, 9, 0, 1376 * 1024)
    srd(a, 32, 12, 13, H_OFF, H_BYTES)
    a("""
    v_and_b32 v14, 3, v13
    v_lshrrev_b32 v15, 2, v13
    v_lshl_add_u32 v14, v15, 3, v14
    v_lshl_add_u32 v6, v14, 10, v6
    v_lshrrev_b32 v15, 1, v3
    v_lshlrev_b32 v15, 4, v15
    v_lshl_add_u32 v15, v17, 2, v15
    v_add_u32 v15, v15, v16
    v_lshl_add_u32 v19, v15, 7, v19
    """)
    for u in range(4):
        a("v_xor_b32 v15, %d, v18" % u)
        a("v_lshl_add_u32 v%d, v15, 5, v19" % (V_TR + u))
    a("s_mul_i32 s3, s14, 2752")
    a("v_lshlrev_b32 v15, 4, v1")
    a("v_add_u32 v%d, s3, v15" % V_AO)
    for rt in range(1, 4):
        a("v_add_u32 v%d, %d, v%d" % (V_AO + rt, rt * 43 * 1024, V_AO))
    a("s_cmp_lt_u32 s17, 3")
    a("s_cselect_b32 s42, 11, 10")
    a("s_lshr_b32 s41, s15, 7")
    a("s_lshr_b32 s3, s14, 6")
    a("s_and_b32 s3, s3, 3")
    a("s_mul_i32 s3, s3, 3")
    a("s_add_u32 s41, s41, s3")
    a("s_cmp_ge_u32 s41, s42")
    a("s_cselect_b32 s3, s42, 0")
    a("s_sub_u32 s41, s41, s3")
    a("s_mov_b32 s41, 0")
    a("s_lshl_b32 s21, s41, 2")
    a("s_add_u32 s21, s21, s17")
    a("s_lshl_b32 s22, s21, 15")
    a("s_lshl_b32 s21, s21, 10")

    def h_issue(i):
        slot = i % 4
        for rt in range(4):
            r = V_AR + slot * 16 + rt * 4
            a("buffer_load_dwordx4 v[%d:%d], v%d, s[32:35], s21 offen" % (r, r + 3, V_AO + rt))
        dma4(a, slot, 22, True)
        a("s_add_u32 s41, s41, 1")
        a("s_cmp_ge_u32 s41, s42")
        a("s_cselect_b32 s41, 0, s41")
        a("s_lshl_b32 s21, s41, 2")
        a("s_add_u32 s21, s21, s17")
        a("s_lshl_b32 s22, s21, 15")
        a("s_lshl_b32 s21, s21, 10")

    HD = int(os.environ.get('K2HD', '3'))

    def h_step(i, n):
        slot = i % 4
        if i + HD <= n - 1:
            h_issue(i + HD)
        a("s_waitcnt vmcnt(%d)" % (8 * (min(i + HD, n - 1) - i)))
        bfrags(a, slot, 1024)
        for ct in range(4):
            a("s_waitcnt lgkmcnt(%d)" % (6 - 2 * ct))
            for rt in range(4):
                c = acc(ct, rt)
                x = V_AR + slot * 16 + rt * 4
                b = V_BF + ct * 4
                a("v_mfma_f32_16x16x32_bf16 v[%d:%d], v[%d:%d], v[%d:%d], v[%d:%d]" % (c, c + 3, b, b + 3, x, x + 3, c, c + 3))

    stamp(a)
    for i in range(HD):
        h_issue(i)
    stamp(a)
    for i in range(10 - HD):
        h_step(i, 11)
        if i % 2 == 0:
            stamp(a)
    a("s_cmp_lt_u32 s17, 3")
    a("s_cbranch_scc0 K2_h_tailY")
    for i in range(10 - HD, 11):
        h_step(i, 11)
    a("s_branch K2_part_out")
    a.label("K2_h_tailY")
    for i in range(10 - HD, 10):
        h_step(i, 10)
    a("s_branch K2_part_out")

    a.label("K2_opart")
    for i in range(64):
        a("v_mov_b32 v%d, 0" % (V_ACC + i))
    srd(a, 24, 6, 7, 0, 512 * 1024)
    srd(a, 32, 12, 13, PHIQ_OFF, PHIQ_BYTES)
    srd(a, 36, 12, 13, KV_OFF, KV_BYTES)
    a("""
    v_lshl_add_u32 v6, v13, 10, v6
    v_lshl_add_u32 v15, v3, 2, v16
    v_lshl_add_u32 v19, v15, 7, v19
    """)
    for u in range(4):
        a("v_xor_b32 v15, %d, v18" % u)
        a("v_lshl_add_u32 v%d, v15, 5, v19" % (V_TR + u))
    a("s_lshl_b32 s3, s14, 11")
    a("v_lshlrev_b32 v15, 4, v1")
    a("v_add_u32 v%d, s3, v15" % V_AO)
    for rt in range(1, 4):
        a("v_add_u32 v%d, %d, v%d" % (V_AO + rt, rt * 32 * 1024, V_AO))
    a("v_lshlrev_b32 v20, 4, v2")
    a("v_lshl_add_u32 v20, v3, 9, v20")
    a("v_lshlrev_b32 v21, 5, v3")
    a("s_lshr_b32 s43, s15, 7")
    a("s_and_b32 s43, s43, 0")
    a("s_mov_b32 s44, s43")
    KVZ = 192
    PH = 128

    def kvz_issue():
        base = KVZ
        a("s_lshl_b32 s3, s43, 2")
        a("s_add_u32 s3, s3, s17")
        a("s_lshl_b32 s22, s3, 12")
        a("s_lshl_b32 s23, s3, 8")
        a("s_add_u32 s23, s23, 65536")
        a("s_add_u32 s43, s43, 1")
        a("s_and_b32 s43, s43, 3")
        for hd in range(2):
            a("buffer_load_dwordx4 v[%d:%d], v20, s[36:39], s22 offen offset:%d" % (base + hd * 8, base + hd * 8 + 3, hd * 2048))
            a("buffer_load_dwordx4 v[%d:%d], v20, s[36:39], s22 offen offset:%d" % (base + hd * 8 + 4, base + hd * 8 + 7, hd * 2048 + 256))
            a("buffer_load_dwordx4 v[%d:%d], v21, s[36:39], s23 offen offset:%d" % (base + 16 + hd * 8, base + 16 + hd * 8 + 3, hd * 128))
            a("buffer_load_dwordx4 v[%d:%d], v21, s[36:39], s23 offen offset:%d" % (base + 16 + hd * 8 + 4, base + 16 + hd * 8 + 7, hd * 128 + 16))

    def ph_issue(i):
        base = PH + (i % 2) * 32
        a("s_lshl_b32 s3, s44, 2")
        a("s_add_u32 s3, s3, s17")
        a("s_lshl_b32 s21, s3, 11")
        a("s_lshl_b32 s40, s3, 15")
        a("s_add_u32 s44, s44, 1")
        a("s_and_b32 s44, s44, 3")
        for hd in range(2):
            for rt in range(4):
                r = base + (hd * 4 + rt) * 4
                a("buffer_load_dwordx4 v[%d:%d], v%d, s[32:35], s21 offen offset:%d" % (r, r + 3, V_AO + rt, hd * 1024))
        dma4(a, i, 40, False)

    def o_step(i, vm):
        base = PH + (i % 2) * 32
        t = 224
        OF = 48
        a("s_waitcnt vmcnt(%d)" % vm)
        bfrags(a, i, 2048)
        for hd in range(2):
            pack(a, t + hd * 8, KVZ + hd * 8, 4)
            pack(a, t + hd * 8 + 4, KVZ + 16 + hd * 8, 4)
        if i == 0:
            ph_issue(1)
        if i < 3:
            kvz_issue()
        for hd in range(2):
            kf = t + hd * 8
            for rt in range(4):
                p = base + (hd * 4 + rt) * 4
                n = t + 16 + rt * 4
                a("v_mfma_f32_16x16x32_bf16 v[%d:%d], v[%d:%d], v[%d:%d], 0" % (n, n + 3, kf, kf + 3, p, p + 3))
            for rt in range(4):
                p = base + (hd * 4 + rt) * 4
                d = 24 + (rt % 2) * 4
                a("v_mfma_f32_16x16x32_bf16 v[%d:%d], v[%d:%d], v[%d:%d], 0" % (d, d + 3, kf + 4, kf + 7, p, p + 3))
                n = t + 16 + rt * 4
                a("v_cvt_pk_bf16_f32 v%d, v%d, v%d" % (d, d, d))
                a("v_lshlrev_b32 v%d, 16, v%d" % (d, d))
                a("v_add_f32 v%d, 0x358637bd, v%d" % (d, d))
                a("v_cvt_pk_bf16_f32 v%d, v%d, v%d" % (d, d, d))
                a("v_lshlrev_b32 v%d, 16, v%d" % (d, d))
                a("v_rcp_f32 v%d, v%d" % (d, d))
                a("v_cvt_pk_bf16_f32 v%d, v%d, v%d" % (d + 1, n, n + 1))
                a("v_cvt_pk_bf16_f32 v%d, v%d, v%d" % (d + 2, n + 2, n + 3))
                unpack(a, n, d + 1, 2)
                for k in range(4):
                    a("v_mul_f32 v%d, v%d, v%d" % (n + k, n + k, d))
                pack(a, OF + rt * 4 + hd * 2, n, 2)
        a("s_waitcnt lgkmcnt(0)")
        for ct in range(4):
            for rt in range(4):
                c = acc(ct, rt)
                b = V_BF + ct * 4
                x = OF + rt * 4
                a("v_mfma_f32_16x16x32_bf16 v[%d:%d], v[%d:%d], v[%d:%d], v[%d:%d]" % (c, c + 3, b, b + 3, x, x + 3, c, c + 3))
        if i < 2:
            ph_issue(i + 2)

    _n2[0] = 1
    stamp(a)
    kvz_issue()
    ph_issue(0)
    stamp(a)
    o_step(0, 0)
    stamp(a)
    o_step(1, 12)
    stamp(a)
    o_step(2, 12)
    stamp(a)
    o_step(3, 0)
    stamp(a)

    a.label("K2_part_out")
    stamp(a)
    a("v_mul_u32_u24 v4, 272, v2")
    a("v_lshl_add_u32 v4, v3, 4, v4")
    a("v_add_u32 v4, s20, v4")
    for ct in range(4):
        for rt in range(4):
            c = acc(ct, rt)
            a("ds_write_b128 v4, v[%d:%d] offset:%d" % (c, c + 3, rt * 16 * 272 + ct * 64))
    srd(a, 24, 4, 5, 0, XN_BYTES)
    srd(a, 28, 10, 11, 0, XN_BYTES)
    a("""
    v_lshrrev_b32 v5, 3, v0
    v_and_b32 v6, 7, v0
    v_add_u32 v7, s14, v5
    v_lshlrev_b32 v7, 10, v7
    v_lshl_add_u32 v7, v6, 4, v7
    v_add_u32 v7, s15, v7
    buffer_load_dwordx4 v[8:11], v7, s[24:27], 0 offen
    v_mul_u32_u24 v5, 272, v5
    v_lshl_add_u32 v5, v6, 5, v5
    v_add_u32 v6, %d, v5
    s_waitcnt lgkmcnt(0)
    s_barrier
    """ % (4 * REG))
    stamp(a)
    for w in range(4):
        a("ds_read_b128 v[%d:%d], v5 offset:%d" % (64 + w * 8, 64 + w * 8 + 3, w * REG))
        a("ds_read_b128 v[%d:%d], v5 offset:%d" % (64 + w * 8 + 4, 64 + w * 8 + 7, w * REG + 16))
    for w in range(4):
        a("ds_read_b128 v[%d:%d], v6 offset:%d" % (96 + w * 8, 96 + w * 8 + 3, w * REG))
        a("ds_read_b128 v[%d:%d], v6 offset:%d" % (96 + w * 8 + 4, 96 + w * 8 + 7, w * REG + 16))
    a("s_waitcnt lgkmcnt(8)")
    for w in range(1, 4):
        for k in range(8):
            a("v_add_f32 v%d, v%d, v%d" % (64 + k, 64 + k, 64 + w * 8 + k))
    a("s_waitcnt lgkmcnt(0)")
    for w in range(1, 4):
        for k in range(8):
            a("v_add_f32 v%d, v%d, v%d" % (96 + k, 96 + k, 96 + w * 8 + k))
    pack(a, 72, 64, 4)
    unpack(a, 64, 72, 4)
    pack(a, 72, 96, 4)
    unpack(a, 96, 72, 4)
    for k in range(8):
        a("v_mul_f32 v%d, 0x%x, v%d" % (104 + k, NLOG2E, 96 + k))
    for k in range(8):
        a("v_exp_f32 v%d, v%d" % (104 + k, 104 + k))
    for k in range(8):
        a("v_add_f32 v%d, 1.0, v%d" % (104 + k, 104 + k))
    for k in range(8):
        a("v_rcp_f32 v%d, v%d" % (104 + k, 104 + k))
    for k in range(8):
        a("v_mul_f32 v%d, v%d, v%d" % (104 + k, 104 + k, 96 + k))
    pack(a, 72, 104, 4)
    unpack(a, 104, 72, 4)
    for k in range(8):
        a("v_mul_f32 v%d, v%d, v%d" % (64 + k, 64 + k, 104 + k))
    pack(a, 72, 64, 4)
    unpack(a, 64, 72, 4)
    a("s_waitcnt vmcnt(0)")
    unpack(a, 96, 8, 4)
    for k in range(8):
        a("v_add_f32 v%d, v%d, v%d" % (64 + k, 64 + k, 96 + k))
    pack(a, 72, 64, 4)
    a("buffer_store_dwordx4 v[72:75], v7, s[28:31], 0 offen " + os.environ.get("K2ST", ""))
    if STAMP2:
        stamp(a)
        a("s_and_b32 s3, s16, 3")
        a("s_cmp_lg_u32 s3, 0")
        a("s_cbranch_scc1 K2_done")
        srd(a, 56, 12, 13, 13 << 20, 1 << 20)
        a("s_lshl_b32 s3, s2, 7")
        a("s_lshl_b32 s62, s16, 4")
        a("s_add_u32 s3, s3, s62")
        for i in range(_n2[0]):
            a("v_mov_b32 v1, s%d" % (64 + i))
            a("v_mov_b32 v2, %d" % (4 * i))
            a("buffer_store_dword v1, v2, s[56:59], s3 offen")
    a.label("K2_done")
    a("s_endpgm")
    return kd("k2_kernel", 256, 100)
```
